```python
import torch

def _softmax(x, axis=-1):
    return torch.softmax(x, dim=axis)
def _gelu(x):
    return torch.nn.functional.gelu(x, approximate="tanh")
def _silu(x):
    return torch.nn.functional.silu(x)
def _sigmoid(x):
    return torch.sigmoid(x)
def _layernorm(x, axis=-1, eps=1e-5):
    m = x.mean(dim=axis, keepdim=True)
    v = x.var(dim=axis, keepdim=True, unbiased=False)
    return (x - m) / torch.sqrt(v + eps)
def _scatter_add(tgt, idx, src, axis=0):
    return tgt.clone().index_add_(axis, idx, src)
def _segment_sum(src, seg, n):
    out = torch.zeros((n,) + src.shape[1:], dtype=src.dtype)
    return out.index_add_(0, seg, src)
def _pad(x, pw):
    flat = tuple(v for pair in reversed(pw) for v in pair)
    return torch.nn.functional.pad(x, flat)

kernel_name = 'sequential_preLN__ssm_conv_h3__glu_gated_reglu__prompt'

def setup_inputs():

    _w = (lambda a: (lambda t: t.to(torch.bfloat16) if t.is_floating_point() else t)(torch.as_tensor(a)))
    def _A_setup():
        B, S, D = 1, 2048, 640
        ks = 4
        return {
            "q": _w((lambda *s: torch.randn(*s, dtype=torch.bfloat16) * 0.05)(B, S, D)),
            "k": _w((lambda *s: torch.randn(*s, dtype=torch.bfloat16) * 0.2)(B, S, D)),
            "v": _w((lambda *s: torch.randn(*s, dtype=torch.bfloat16) * 0.2)(B, S, D)),
            "shift_k": _w((lambda *s: torch.randn(*s, dtype=torch.bfloat16) * 0.2)(D, ks) * 0.5),
            "ssm_k": _w((lambda *s: torch.randn(*s, dtype=torch.bfloat16) * 0.4)(D, S) * (1.0 / S ** 0.5)),
            "ssm_D": _w((lambda *s: torch.randn(*s, dtype=torch.bfloat16) * 0.2)(D)),
        }
    _A_in = _A_setup()

    def _B_setup():
        B, S, D, F = 1, 2048, 640, 1728
        return {
            "x": _w((lambda *s: torch.randn(*s, dtype=torch.bfloat16) * 0.05)(B, S, D)),
            "W_gate": _w((lambda *s: torch.randn(*s, dtype=torch.bfloat16) * 0.2)(D, F) * (2.0 / D) ** 0.5),
            "W_up": _w((lambda *s: torch.randn(*s, dtype=torch.bfloat16) * 0.2)(D, F) * (2.0 / D) ** 0.5),
            "W_down": _w((lambda *s: torch.randn(*s, dtype=torch.bfloat16) * 0.2)(F, D) * (1.0 / F) ** 0.5),
        }
    _B_in = _B_setup()

    return {
        "A_q": _A_in["q"],
        "A_k": _A_in["k"],
        "A_v": _A_in["v"],
        "A_shift_k": _A_in["shift_k"],
        "A_ssm_k": _A_in["ssm_k"],
        "A_ssm_D": _A_in["ssm_D"],
        "B_x": _B_in["x"],
        "B_W_gate": _B_in["W_gate"],
        "B_W_up": _B_in["W_up"],
        "B_W_down": _B_in["W_down"],
    }

def reference(A_q, A_k, A_v, A_shift_k, A_ssm_k, A_ssm_D, B_x, B_W_gate, B_W_up, B_W_down):
    def _A_ref(q, k, v, shift_k, ssm_k, ssm_D):
        B, S, D = q.shape
        ks = shift_k.shape[-1]
        k_pad = _pad(k, ((0, 0), (ks - 1, 0), (0, 0)))
        k_shift = torch.zeros_like(k)
        for t in range(ks):
            k_shift = k_shift + k_pad[:, t:t + S, :] * shift_k[:, ks - 1 - t][None, None, :]
        kv = k_shift * v
        L = 2 * S
        kv_pad = _pad(kv, ((0, 0), (0, S), (0, 0)))
        kf_pad = _pad(ssm_k, ((0, 0), (0, S)))
        kv_f = (lambda x, axes=(-2,-1): torch.fft.rfft2(x.float(), dim=axes))(kv_pad[:, None, :, :], axes=(1, 2))
        kf_f = (lambda x, axes=(-2,-1): torch.fft.rfft2(x.float(), dim=axes))(kf_pad[:, None, :], axes=(1, 2))
        kf_f = (lambda x, *d: x.permute(*d))(kf_f, 1, 2, 0)
        y_f = kv_f * kf_f[None, :, :, :]
        y = (lambda x, s, axes=(-2,-1): torch.fft.irfft2(x, s=s, dim=axes).to(torch.bfloat16))(y_f, (1, L), axes=(1, 2))[:, 0, :S, :]
        y = y + kv * ssm_D[None, None, :]
        return q * y

    def _B_ref(x, W_gate, W_up, W_down):
        gate = torch.einsum("bsd,df->bsf", x, W_gate)
        up = torch.einsum("bsd,df->bsf", x, W_up)
        gate = gate * (lambda x, dt: x.to(dt))(gate > 0, gate.dtype)
        h = gate * up
        return torch.einsum("bsf,fd->bsd", h, W_down)

    x = A_q
    h = x + _A_ref(_layernorm(x, axis=-1), A_k, A_v, A_shift_k, A_ssm_k, A_ssm_D)
    h2 = h + _B_ref(_layernorm(h, axis=-1), B_W_gate, B_W_up, B_W_down)
    return h2
```

```python
import re

TRANS = ("v_exp_f32", "v_log_f32", "v_rcp_f32", "v_rsq_f32", "v_sqrt_f32", "v_sin_f32", "v_cos_f32")

def regs_of(tok):
    tok = tok.strip()
    neg = tok.lstrip("-")
    if neg.startswith("abs(") or neg.startswith("|"):
        neg = neg.replace("abs(", "").replace(")", "").replace("|", "")
    tok = neg
    m = re.fullmatch(r"([vas])(\d+)", tok)
    if m:
        return [(m.group(1), int(m.group(2)))]
    m = re.fullmatch(r"([vas])\[(\d+):(\d+)\]", tok)
    if m:
        return [(m.group(1), i) for i in range(int(m.group(2)), int(m.group(3)) + 1)]
    if tok == "vcc":
        return [("s", 106), ("s", 107)]
    if tok == "exec":
        return [("s", 126), ("s", 127)]
    if tok == "m0":
        return [("s", 124)]
    return []

class Ins:
    __slots__ = ("text", "op", "ops", "mods", "wr", "rd", "kind", "srcA", "srcB", "srcC", "passes", "label", "target", "dpp", "lds_dma", "sdata")
    def __init__(self, text):
        self.text = text
        t = text.split(";")[0].strip()
        self.label = None; self.target = None; self.kind = None
        self.wr = []; self.rd = []; self.srcA = []; self.srcB = []; self.srcC = []; self.passes = 0
        self.dpp = False; self.lds_dma = False; self.sdata = []
        self.op = ""; self.ops = []; self.mods = ""
        if not t or t.startswith("."):
            self.kind = "dir"; return
        if t.endswith(":"):
            self.kind = "label"; self.label = t[:-1]; return
        parts = t.split(None, 1)
        op = parts[0]; self.op = op
        rest = parts[1] if len(parts) > 1 else ""
        toks = []
        depth = 0; cur = ""
        for ch in rest:
            if ch in "[(": depth += 1
            if ch in "])": depth -= 1
            if ch == "," and depth == 0:
                toks.append(cur.strip()); cur = ""
            else:
                cur += ch
        if cur.strip(): toks.append(cur.strip())
        if toks:
            last = toks[-1].split(None, 1)
            toks[-1] = last[0]
            self.mods = last[1] if len(last) > 1 else ""
        self.ops = toks
        R = regs_of
        if op.startswith("v_mfma"):
            self.kind = "mfma"
            self.wr = R(toks[0]); self.srcA = R(toks[1]); self.srcB = R(toks[2]); self.srcC = R(toks[3])
            self.rd = self.srcA + self.srcB + self.srcC
            self.passes = 8 if "32x32" in op else 4
        elif op.startswith("v_"):
            self.kind = "valu"
            self.dpp = ("row_" in self.mods or "quad_perm" in self.mods or "_dpp" in op or "wave_" in self.mods)
            if op.startswith("v_permlane") and "swap" in op:
                self.wr = R(toks[0]) + R(toks[1]); self.rd = list(self.wr)
            elif op.startswith("v_cmp"):
                self.wr = R(toks[0])
                if op.startswith("v_cmpx"): self.wr += R("exec")
                for x in toks[1:]: self.rd += R(x)
            elif op.startswith(("v_add_co", "v_sub_co", "v_addc_co", "v_subb_co", "v_subrev_co", "v_div_scale", "v_mad_u64")):
                self.wr = R(toks[0]) + R(toks[1])
                for x in toks[2:]: self.rd += R(x)
            else:
                self.wr = R(toks[0])
                for x in toks[1:]: self.rd += R(x)
                if op.startswith(("v_fmac", "v_mac", "v_dot2c", "v_pk_fmac", "v_writelane")) or self.dpp:
                    self.rd += R(toks[0])
                if op.startswith("v_cndmask") and len(toks) == 3:
                    self.rd += R("vcc")
        elif op.startswith("ds_"):
            self.kind = "ds"
            if op.startswith(("ds_read", "ds_bpermute", "ds_permute", "ds_swizzle")):
                self.wr = R(toks[0])
                for x in toks[1:]: self.rd += R(x)
            else:
                for x in toks: self.rd += R(x)
        elif op.startswith(("buffer_", "global_")):
            self.kind = "vmem"
            if op in ("buffer_wbl2", "buffer_inv"):
                pass
            elif op.startswith("buffer_load") and re.search(r"\blds\b", self.mods):
                self.lds_dma = True
                for x in toks: self.rd += R(x)
                self.rd += R("m0")
            elif op.startswith("global_load_lds"):
                self.lds_dma = True
                for x in toks: self.rd += R(x)
                self.rd += R("m0")
            elif "_load" in op:
                self.wr = R(toks[0])
                for x in toks[1:]: self.rd += R(x)
            elif op.startswith("buffer_store"):
                self.sdata = R(toks[0])
                for x in toks: self.rd += R(x)
            elif op.startswith("global_store"):
                self.sdata = R(toks[1])
                for x in toks: self.rd += R(x)
            elif "atomic" in op:
                for x in toks: self.rd += R(x)
                if "sc0" in self.mods:
                    self.wr = R(toks[0])
        elif op.startswith(("s_load", "s_buffer_load", "s_memtime", "s_memrealtime", "s_atomic")):
            self.kind = "smem"
            self.wr = R(toks[0])
            for x in toks[1:]: self.rd += R(x)
        elif op in ("s_branch",) or op.startswith("s_cbranch"):
            self.kind = "branch"; self.target = toks[0]
        elif op in ("s_waitcnt", "s_nop", "s_barrier", "s_endpgm", "s_setprio", "s_sleep"):
            self.kind = op
        elif op.startswith("s_"):
            self.kind = "salu"
            if op.startswith("s_cmp"):
                for x in toks: self.rd += R(x)
            else:
                self.wr = R(toks[0])
                for x in toks[1:]: self.rd += R(x)
                if "saveexec" in op:
                    self.wr += R("exec"); self.rd += R("exec")
                if op in ("s_addk_i32", "s_mulk_i32"):
                    self.rd += R(toks[0])
        else:
            raise ValueError("unknown instruction: " + text)

    def states(self):
        if self.kind == "s_nop":
            return int(self.ops[0], 0) + 1
        if self.kind in ("dir", "label"):
            return 0
        return 1

def _ov(a, b):
    return bool(set(a) & set(b))

def need(p, c):
    n = 0
    vp = [r for r in p.wr if r[0] in "va"]
    sp = [r for r in p.wr if r[0] == "s"]
    if p.kind == "valu":
        if c.kind == "mfma" and _ov(vp, c.rd): n = max(n, 2)
        if c.kind == "vmem" and _ov(sp, c.rd): n = max(n, 5)
        if c.kind == "valu":
            if _ov(sp, c.rd):
                n = max(n, 4 if c.op.startswith(("v_readlane", "v_writelane")) else 2)
            if c.op.startswith(("v_readlane", "v_readfirstlane")) and _ov(vp, c.rd): n = max(n, 1)
            if c.dpp and _ov(vp, c.rd): n = max(n, 2)
            if c.op.startswith("v_permlane") and _ov(vp, c.rd): n = max(n, 2)
            if p.op.startswith(TRANS) and not c.op.startswith(TRANS) and _ov(vp, c.rd): n = max(n, 1)
            if ("op_sel" in p.mods or "sdwa" in p.op or "dst_sel" in p.mods) and _ov(vp, c.rd + c.wr): n = max(n, 1)
            if c.op.startswith("v_div_fmas") and _ov(sp, regs_of("vcc")): n = max(n, 4)
        if p.op.startswith("v_dot") and c.kind in ("valu", "mfma", "vmem", "ds") and _ov(vp, c.rd + c.wr) and not (c.op == p.op and len(c.ops) > 3 and set(vp) == set(regs_of(c.ops[3])) and not _ov(vp, regs_of(c.ops[1]) + regs_of(c.ops[2]))): n = max(n, 3)
        if c.kind in ("salu", "branch", "smem") and (_ov(sp, c.rd) or (c.kind == "branch" and sp)): n = max(n, 2)
        if _ov(sp, regs_of("exec")) and c.kind in ("mfma", "valu"): n = max(n, 5)
    if p.kind == "mfma":
        big = {4: 8, 8: 12}[p.passes]
        if c.kind == "mfma":
            if _ov(p.wr, c.srcA + c.srcB): n = max(n, big)
            if _ov(p.wr, c.srcC) and not (p.wr == c.srcC and p.passes == c.passes): n = max(n, big - 2)
            if _ov(p.wr, c.wr) and not _ov(p.wr, c.srcC): n = max(n, big)
        elif c.kind in ("valu", "vmem", "ds"):
            if _ov(p.wr, c.rd + c.wr): n = max(n, big)
            if c.kind == "valu" and _ov(p.srcC, c.wr): n = max(n, {4: 3, 8: 7}[p.passes])
    if p.kind == "vmem" and len(p.sdata) >= 3:
        if _ov(p.sdata, c.wr): n = max(n, 2 if c.kind in ("valu", "mfma") else 1)
    if p.kind == "salu" and _ov(p.wr, regs_of("m0")) and c.lds_dma: n = max(n, 1)
    return n

WINDOW = 22

def hazard_pass(lines):
    ins = [Ins(l) for l in lines]
    out = []
    label_hist = {}
    def check(hist, c):
        d = 0; worst = 0
        for p in reversed(hist):
            nn = need(p, c) - d
            worst = max(worst, nn)
            d += p.states()
            if d > WINDOW: break
        return worst
    hists = [[]]
    label_pos = {}
    for i in ins:
        if i.kind == "label":
            label_pos[i.label] = len(out)
            hists = hists + label_hist.get(i.label, [])
            out.append(i); continue
        if i.kind == "dir":
            out.append(i); continue
        w = max(check(h, i) for h in hists) if hists else 0
        while w > 0:
            k = min(w, 16)
            nop = Ins("    s_nop %d" % (k - 1))
            out.append(nop)
            for h in hists: h.append(nop)
            w -= k
        if i.kind == "branch":
            if i.target in label_pos:
                extra = 0
                for h in hists:
                    hh = list(h) + [i]
                    cnt = 0
                    for c in out[label_pos[i.target]:]:
                        if c.kind in ("label", "dir"): continue
                        extra = max(extra, check(hh, c))
                        hh.append(c); cnt += c.states()
                        if cnt > WINDOW: break
                while extra > 0:
                    k = min(extra, 16)
                    nop = Ins("    s_nop %d" % (k - 1))
                    out.append(nop)
                    for h in hists: h.append(nop)
                    extra -= k
            else:
                label_hist.setdefault(i.target, []).extend([(list(h) + [i])[-WINDOW - 2:] for h in hists])
        out.append(i)
        if i.op in ("s_branch", "s_endpgm"):
            hists = []
        else:
            hists = [(h + [i])[-WINDOW - 2:] for h in hists]
            if len(hists) > 1 and all(h == hists[0] for h in hists): hists = [hists[0]]
        if not hists and i.op not in ("s_branch", "s_endpgm"): hists = [[i]]
    return out

def wait_check(ins, name=""):
    vm = []
    lg = []
    errs = []
    for n, i in enumerate(ins):
        if i.kind in ("dir", "label"): continue
        if i.kind == "s_waitcnt":
            m = re.search(r"vmcnt\((\d+)\)", i.text)
            if m:
                k = int(m.group(1)); vm = vm[len(vm) - k:] if k < len(vm) else vm
                if k == 0: vm = []
            m = re.search(r"lgkmcnt\((\d+)\)", i.text)
            if m:
                k = int(m.group(1))
                if k == 0: lg = []
                elif any(x[0] == "smem" for x in lg):
                    pass
                elif k < len(lg): lg = lg[len(lg) - k:]
            continue
        touched = set(i.rd) | set(i.wr)
        for q in vm:
            if touched & set(q): errs.append("%s: vm hazard at %d: %s" % (name, n, i.text.strip()))
        for k_, q in lg:
            if touched & set(q):
                if i.kind == "ds" and k_ == "ds" and not (set(i.rd) & set(q)): continue
                errs.append("%s: lgkm hazard at %d: %s" % (name, n, i.text.strip()))
        if i.kind == "vmem": vm.append(list(i.wr))
        if i.kind == "ds": lg.append(("ds", list(i.wr)))
        if i.kind == "smem": lg.append(("smem", list(i.wr)))
        if len(vm) > 63: errs.append("%s: >63 vmem outstanding at %d" % (name, n))
        if len(lg) > 15 and False: errs.append("%s: >15 lgkm outstanding at %d" % (name, n))
        if i.op in ("s_branch", "s_endpgm"):
            vm = []; lg = []
    return errs

class K:
    def __init__(self, name):
        self.name = name; self.lines = []
    def __call__(self, s):
        for l in s.strip("\n").split("\n"):
            l = l.strip()
            if not l: continue
            self.lines.append(l if (l.endswith(":") or l.startswith(".")) else "    " + l)
    def label(self, l): self.lines.append(l + ":")
    def finish(self):
        ins = hazard_pass(self.lines)
        errs = wait_check(ins, self.name)
        for e in errs: print("WAITCHECK", e)
        maxv = maxa = maxs = -1
        for i in ins:
            for k_, x in i.rd + i.wr:
                if k_ == "v": maxv = max(maxv, x)
                if k_ == "a": maxa = max(maxa, x)
                if k_ == "s" and x < 102: maxs = max(maxs, x)
        return [i.text for i in ins], maxv + 1, maxa + 1, maxs + 1, len(errs)

def v(a, n=1): return "v%d" % a if n == 1 else "v[%d:%d]" % (a, a + n - 1)
def a_(a, n=1): return "a%d" % a if n == 1 else "a[%d:%d]" % (a, a + n - 1)
def s(a, n=1): return "s%d" % a if n == 1 else "s[%d:%d]" % (a, a + n - 1)

def kernel_text(k):
    lines, nv, na, ns, nerr = k.finish()
    acc = ((max(nv, 4) + 3) // 4) * 4
    nfv = acc + na if na > 0 else nv
    txt = [".text", ".globl %s" % k.name, ".p2align 8", ".type %s,@function" % k.name, "%s:" % k.name] + lines
    desc = [".section .rodata,\"a\"", ".p2align 6", ".amdhsa_kernel %s" % k.name,
            "  .amdhsa_next_free_vgpr %d" % nfv, "  .amdhsa_next_free_sgpr %d" % max(ns, 16),
            "  .amdhsa_accum_offset %d" % acc, "  .amdhsa_group_segment_fixed_size 0",
            "  .amdhsa_kernarg_size 104", "  .amdhsa_user_sgpr_count 2",
            "  .amdhsa_user_sgpr_kernarg_segment_ptr 1", "  .amdhsa_system_sgpr_workgroup_id_x 1",
            "  .amdhsa_float_denorm_mode_32 3",
            ".end_amdhsa_kernel"]
    print("kernel %s: %d lines, vgpr %d agpr %d sgpr %d, waitcheck errors %d" % (k.name, len(lines), nv, na, ns, nerr))
    return "\n".join(txt), "\n".join(desc)
```

```python
import sys
from asmlib import *

NAME = "sequential_preLN__ssm_conv_h3__glu_gated_reglu__prompt"
S, D, F = 2048, 640, 1728
WS_KX, SZ_KX = 0x000000, 256 * 20480
WS_ST, SZ_ST = 0x500000, 16384
WS_HT, SZ_HT = 0x600000, 128 * 20480
WS_W1, SZ_W1 = 0x900000, 112 * 40960
WS_CS, SZ_CS = 0xE00000, 112 * 128
WS_W2, SZ_W2 = 0xF00000, 8 * 54 * 5120
WS_HP, SZ_HP = 0x1200000, 32 * 54 * 4096
A_Q, A_K, A_V, A_SH, A_SSMK, A_SSMD, A_WG, A_WU, A_WD, A_OUT, A_DBG, A_WS = 0, 8, 16, 24, 32, 40, 56, 64, 72, 80, 88, 96

def srd(k, dst, lo, size, add=0):
    if add:
        k("s_add_u32 s%d, s%d, 0x%x" % (dst, lo, add))
        k("s_addc_u32 s%d, s%d, 0" % (dst + 1, lo + 1))
    else:
        k("s_mov_b32 s%d, s%d" % (dst, lo))
        k("s_mov_b32 s%d, s%d" % (dst + 1, lo + 1))
    k("s_mov_b32 s%d, 0x%x" % (dst + 2, size))
    k("s_mov_b32 s%d, 0x20000" % (dst + 3))

def bf16_round(k, dst, src):
    k("v_cvt_pk_bf16_f32 v%d, v%d, v%d" % (dst, src, src))
    k("v_and_b32 v%d, 0xffff0000, v%d" % (dst, dst))

class VM:
    def __init__(self): self.n = 0; self.tags = {}
    def issue(self, tag=None):
        self.n += 1
        if tag is not None: self.tags[tag] = self.n
    def wait(self, *tags):
        last = max(self.tags[t] for t in tags)
        return self.n - last

def gen_k0():
    k = K("k0_prep_kernel")
    k("s_cmp_ge_u32 s2, 256")
    k("s_cbranch_scc1 K0_END")
    k("s_load_dwordx8 s[36:43], s[0:1], 0")
    k("s_load_dwordx2 s[44:45], s[0:1], %d" % A_WS)
    k("v_lshlrev_b32 v1, 2, v0")
    k("v_lshlrev_b32 v2, 4, v0")
    k("s_mul_i32 s32, s2, %d" % (8 * 1280))
    k("s_add_u32 s33, s32, 3840")
    k("s_add_u32 s34, s32, 7680")
    k("s_sub_u32 s35, s32, 3840")
    k("s_cmp_eq_u32 s2, 0")
    k("s_cselect_b32 s35, 0x7fffffff, s35")
    k("s_waitcnt lgkmcnt(0)")
    srd(k, 16, 36, S * D * 2)
    srd(k, 8, 38, S * D * 2)
    srd(k, 12, 40, S * D * 2)
    srd(k, 20, 42, D * 8)
    def rowload(dst, srdn, j):
        so, imm = [(32, 0), (32, 1280), (32, 2560), (33, 0), (33, 1280), (33, 2560), (34, 0), (34, 1280)][j]
        k("buffer_load_dword v%d, v1, s[%d:%d], s%d offen offset:%d" % (dst, srdn, srdn + 3, so, imm))
    for j in range(8): rowload(10 + j, 16, j)
    for j in range(3): k("buffer_load_dword v%d, v1, s[8:11], s35 offen offset:%d" % (20 + j, 1280 * j))
    for j in range(8): rowload(23 + j, 8, j)
    k("buffer_load_dwordx4 v[32:35], v2, s[20:23], 0 offen")
    for j in range(8): rowload(36 + j, 12, j)
    srd(k, 24, 44, SZ_KX, WS_KX)
    srd(k, 28, 44, SZ_ST, WS_ST)
    k("v_and_b32 v3, 63, v0")
    k("v_lshrrev_b32 v4, 6, v0")
    k("v_lshlrev_b32 v5, 12, v4")
    k("v_lshl_add_u32 v6, v3, 4, v5")
    k("v_add_u32 v5, 1024, v5")
    k("v_lshrrev_b32 v7, 1, v3")
    k("v_and_b32 v7, 3, v7")
    k("v_lshlrev_b32 v7, 4, v7")
    k("v_lshl_add_u32 v7, v3, 6, v7")
    k("v_add_u32 v7, v7, v5")
    k("v_xor_b32 v44, 16, v7")
    k("v_xor_b32 v45, 32, v7")
    k("v_xor_b32 v46, 48, v7")
    k("v_lshrrev_b32 v8, 3, v3")
    k("v_xor_b32 v8, v8, v3")
    k("v_and_b32 v8, 3, v8")
    k("v_lshlrev_b32 v8, 4, v8")
    k("v_lshrrev_b32 v9, 2, v3")
    k("v_lshl_add_u32 v8, v9, 6, v8")
    k("v_add_u32 v8, v8, v5")
    k("v_lshlrev_b32 v9, 6, v4")
    k("v_lshrrev_b32 v47, 4, v3")
    k("v_lshl_add_u32 v9, v47, 4, v9")
    k("s_mov_b32 s46, 0x3f803f80")
    k("s_mov_b32 s47, 0x05040100")
    k("s_mov_b32 s48, 0x07060302")
    k("s_waitcnt vmcnt(20)")
    for j in range(8):
        k("v_dot2_f32_bf16 v%d, v%d, s46, 0" % (50 + j, 10 + j))
        k("v_dot2_f32_bf16 v%d, v%d, v%d, 0" % (58 + j, 10 + j, 10 + j))
    for d in range(4):
        k("v_perm_b32 v%d, v%d, v%d, s47" % (128 + d, 10 + 6 - 2 * d, 10 + 7 - 2 * d))
        k("v_perm_b32 v%d, v%d, v%d, s48" % (136 + d, 10 + 6 - 2 * d, 10 + 7 - 2 * d))
    for j in range(8): k("v_permlane32_swap_b32 v%d, v%d" % (50 + j, 58 + j))
    for j in range(8): k("v_add_f32 v%d, v%d, v%d" % (50 + j, 50 + j, 58 + j))
    for j in range(4): k("v_permlane16_swap_b32 v%d, v%d" % (50 + j, 54 + j))
    for j in range(4): k("v_add_f32 v%d, v%d, v%d" % (52 + j + 8, 50 + j, 54 + j))
    for sh in (8, 4, 2, 1):
        for j in range(4):
            k("v_add_f32_dpp v%d, v%d, v%d row_ror:%d row_mask:0xf bank_mask:0xf" % (60 + j, 60 + j, 60 + j, sh))
    k("s_mov_b64 s[50:51], exec")
    k("s_mov_b32 s52, 0x00010001")
    k("s_mov_b32 s53, 0x00010001")
    k("s_mov_b64 exec, s[52:53]")
    k("ds_write_b128 v9, v[60:63]")
    k("s_mov_b64 exec, s[50:51]")
    k("ds_write_b128 v44, v[128:131]")
    k("ds_write_b128 v46, v[136:139]")
    k("s_waitcnt vmcnt(8)")
    for i in range(11):
        k("v_lshlrev_b32 v%d, 16, v%d" % (64 + 2 * i, 20 + i))
        k("v_and_b32 v%d, 0xffff0000, v%d" % (65 + 2 * i, 20 + i))
    for t in range(4):
        for e in range(2):
            src = 32 + 2 * e + (t >> 1)
            if t & 1: k("v_and_b32 v%d, 0xffff0000, v%d" % (86 + 2 * t + e, src))
            else: k("v_lshlrev_b32 v%d, 16, v%d" % (86 + 2 * t + e, src))
    for j in range(8):
        k("v_pk_mul_f32 v[%d:%d], v[%d:%d], v[92:93]" % (110 + 2 * j, 111 + 2 * j, 64 + 2 * j, 65 + 2 * j))
    for t in (2, 1, 0):
        for j in range(8):
            r = 64 + 2 * (j + 3 - t)
            k("v_pk_fma_f32 v[%d:%d], v[%d:%d], v[%d:%d], v[%d:%d]" % (110 + 2 * j, 111 + 2 * j, r, r + 1, 86 + 2 * t, 87 + 2 * t, 110 + 2 * j, 111 + 2 * j))
    k("s_waitcnt vmcnt(0)")
    for j in range(8):
        k("v_lshlrev_b32 v%d, 16, v%d" % (94 + 2 * j, 36 + j))
        k("v_and_b32 v%d, 0xffff0000, v%d" % (95 + 2 * j, 36 + j))
    for j in range(8):
        k("v_pk_mul_f32 v[%d:%d], v[%d:%d], v[%d:%d]" % (110 + 2 * j, 111 + 2 * j, 110 + 2 * j, 111 + 2 * j, 94 + 2 * j, 95 + 2 * j))
    for e in range(2):
        for d in range(4):
            k("v_cvt_pk_bf16_f32 v%d, v%d, v%d" % (140 + 4 * e + d, 110 + 2 * (7 - 2 * d) + e, 110 + 2 * (6 - 2 * d) + e))
    k("ds_write_b128 v7, v[140:143]")
    k("ds_write_b128 v45, v[144:147]")
    k("s_waitcnt lgkmcnt(0)")
    for i in range(4): k("ds_read_b128 v[%d:%d], v8 offset:%d" % (64 + 4 * i, 67 + 4 * i, 1024 * i))
    k("s_mul_i32 s33, s2, 20480")
    for i in range(4):
        k("s_waitcnt lgkmcnt(%d)" % (3 - i))
        k("buffer_store_dwordx4 v[%d:%d], v6, s[24:27], s33 offen offset:%d" % (64 + 4 * i, 67 + 4 * i, 1024 * i))
    k("s_barrier")
    k("v_cmp_gt_u32 vcc, 8, v0")
    k("s_and_saveexec_b64 s[50:51], vcc")
    k("s_cbranch_execz K0_END")
    for w in range(5): k("ds_read2_b32 v[%d:%d], v1 offset0:%d offset1:%d" % (10 + 2 * w, 11 + 2 * w, 16 * w, 16 * w + 8))
    k("s_lshr_b32 s33, s2, 5")
    k("s_lshl_b32 s33, s33, 10")
    k("s_bfe_u32 s34, s2, 0x40001")
    k("s_lshl_b32 s34, s34, 4")
    k("s_add_u32 s33, s33, s34")
    k("s_and_b32 s34, s2, 1")
    k("s_lshl_b32 s34, s34, 9")
    k("s_add_u32 s33, s33, s34")
    k("v_lshrrev_b32 v3, 2, v0")
    k("v_lshlrev_b32 v3, 8, v3")
    k("v_and_b32 v4, 3, v0")
    k("v_lshl_add_u32 v3, v4, 2, v3")
    k("s_waitcnt lgkmcnt(0)")
    for w in range(1, 5): k("v_pk_add_f32 v[10:11], v[10:11], v[%d:%d]" % (10 + 2 * w, 11 + 2 * w))
    ln_stats(k, 10, 11, 12, 13, 14)
    k("v_mul_f32 v12, v12, v13")
    k("v_sub_f32 v12, 0, v12")
    k("buffer_store_dword v13, v3, s[28:31], s33 offen")
    k("s_add_u32 s33, s33, 8192")
    k("buffer_store_dword v12, v3, s[28:31], s33 offen")
    k.label("K0_END")
    k("s_endpgm")
    return k

def ln_stats(k, vs, vq, vm, vr, vt):
    k("v_mul_f32 v%d, 0x3acccccd, v%d" % (vt, vs))
    k("v_mul_f32 v%d, 0x3acccccd, v%d" % (vq, vq))
    k("v_fma_f32 v%d, -v%d, v%d, v%d" % (vq, vt, vt, vq))
    k("v_max_f32 v%d, 0, v%d" % (vq, vq))
    bf16_round(k, vm, vt)
    bf16_round(k, vq, vq)
    k("v_add_f32 v%d, 0x3727c5ac, v%d" % (vq, vq))
    bf16_round(k, vq, vq)
    k("v_sqrt_f32 v%d, v%d" % (vq, vq))
    bf16_round(k, vq, vq)
    k("v_rcp_f32 v%d, v%d" % (vr, vq))

KXL, STL, KCL = 4096, 36864, 53248
K1_LDS = 86528

def gen_k1():
    k = K("k1_conv_kernel")
    k("s_cmp_ge_u32 s2, 160")
    k("s_cbranch_scc1 K1_PACK")
    k("s_load_dwordx4 s[36:39], s[0:1], %d" % A_SSMK)
    k("s_load_dwordx2 s[44:45], s[0:1], %d" % A_WS)
    k("v_lshrrev_b32 v4, 6, v0")
    k("v_and_b32 v3, 63, v0")
    k("v_readfirstlane_b32 s3, v4")
    k("v_and_b32 v5, 15, v3")
    k("v_lshrrev_b32 v6, 4, v3")
    k("v_lshlrev_b32 v2, 4, v3")
    k("s_and_b32 s4, s3, 1")
    k("s_lshl_b32 s4, s4, 2")
    k("v_or_b32 v7, s4, v6")
    k("v_xor_b32 v7, v7, v3")
    k("v_and_b32 v7, 7, v7")
    k("v_lshlrev_b32 v7, 4, v7")
    k("v_lshrrev_b32 v8, 3, v3")
    k("v_mul_u32_u24 v8, 20480, v8")
    k("v_add_u32 v7, v7, v8")
    k("s_lshl_b32 s5, s2, 2")
    k("s_add_u32 s5, s5, s3")
    k("s_waitcnt lgkmcnt(0)")
    srd(k, 8, 44, SZ_KX, WS_KX)
    srd(k, 12, 36, D * S * 2)
    srd(k, 16, 44, SZ_ST, WS_ST)
    srd(k, 20, 44, SZ_HT, WS_HT)
    k("s_lshl_b32 s6, s5, 12")
    k("s_add_u32 s24, s36, s6")
    k("s_addc_u32 s25, s37, 0")
    k("s_load_dword s26, s[24:25], 0")
    k("s_lshr_b32 s7, s5, 1")
    k("s_lshl_b32 s7, s7, 2")
    k("s_add_u32 s24, s38, s7")
    k("s_addc_u32 s25, s39, 0")
    k("s_load_dword s27, s[24:25], 0")
    k("s_mul_i32 s28, s3, 8320")
    k("s_add_u32 s28, s28, %d" % (KCL + 32))
    k("s_mov_b32 m0, s28")
    for i in range(4): k("buffer_load_dwordx4 v2, s[12:15], s6 offen offset:%d lds" % (1024 * i))
    k("s_add_u32 s29, s28, 4160")
    k("s_mov_b32 m0, s29")
    k("s_add_u32 s30, s6, 2")
    for i in range(4): k("buffer_load_dwordx4 v2, s[12:15], s30 offen offset:%d lds" % (1024 * i))
    k("s_lshl_b32 s31, s2, 7")
    k("s_mul_i32 s32, s3, %d" % (8 * 20480))
    k("s_add_u32 s31, s31, s32")
    k("s_lshl_b32 s33, s3, 10")
    k("s_add_u32 s33, s33, %d" % KXL)
    for ii in range(8):
        k("s_mov_b32 m0, s33")
        k("s_add_u32 s33, s33, 4096")
        k("buffer_load_dwordx4 v7, s[8:11], s31 offen lds")
        k("s_add_u32 s31, s31, %d" % (32 * 20480))
    k("s_lshl_b32 s34, s3, 12")
    k("s_add_u32 s35, s34, %d" % STL)
    k("s_mov_b32 m0, s35")
    for i in range(4): k("buffer_load_dwordx4 v2, s[16:19], s34 offen offset:%d lds" % (1024 * i))
    for i in range(4): k("v_mov_b32 v%d, 0" % (12 + i))
    k("v_lshlrev_b32 v8, 4, v0")
    k("ds_write_b128 v8, v[12:15]")
    k("v_lshlrev_b32 v9, 2, v3")
    k("v_add_u32 v9, s28, v9")
    k("v_subrev_u32 v9, 32, v9")
    k("s_waitcnt lgkmcnt(0)")
    k("s_lshl_b32 s26, s26, 16")
    k("v_mov_b32 v10, 0")
    k("v_writelane_b32 v10, s26, 7")
    k("s_mov_b64 exec, 0xff")
    k("ds_write_b32 v9, v12")
    k("ds_write_b32 v9, v10 offset:4160")
    k("s_mov_b64 exec, -1")
    k("s_and_b32 s4, s5, 1")
    k("s_lshl_b32 s40, s27, 16")
    k("s_and_b32 s41, s27, 0xffff0000")
    k("s_cmp_eq_u32 s4, 1")
    k("s_cselect_b32 s40, s41, s40")
    k("v_add_u32 v8, 1, v5")
    k("v_lshrrev_b32 v8, 1, v8")
    k("v_lshlrev_b32 v8, 2, v8")
    k("v_lshl_add_u32 v8, v6, 4, v8")
    k("v_and_b32 v9, 1, v5")
    k("v_xor_b32 v9, 1, v9")
    k("v_mul_u32_u24 v9, 4160, v9")
    k("v_add3_u32 v16, v8, v9, s28")
    k("v_subrev_u32 v16, 32, v16")
    for i in range(1, 4): k("v_add_u32 v%d, %d, v16" % (16 + i, 1024 * i))
    k("s_lshl_b32 s42, s3, 1")
    for rr in range(4):
        k("v_lshlrev_b32 v8, 1, v5")
        k("v_sub_u32 v8, v8, v6")
        k("v_subrev_u32 v8, %d, v8" % (4 * (4 + rr) - 1))
        k("v_ashrrev_i32 v9, 1, v8")
        k("v_and_b32 v9, 7, v9")
        k("v_xor_b32 v9, s42, v9")
        k("v_lshlrev_b32 v9, 4, v9")
        k("v_lshl_add_u32 v9, v8, 7, v9")
        k("v_add_u32 v%d, %d, v9" % (20 + rr, KXL))
    k("v_lshrrev_b32 v8, 1, v6")
    k("v_lshl_add_u32 v8, v5, 1, v8")
    k("v_lshlrev_b32 v8, 7, v8")
    k("v_and_b32 v9, 7, v5")
    k("v_xor_b32 v9, s42, v9")
    k("v_lshl_add_u32 v8, v9, 4, v8")
    k("v_and_b32 v9, 1, v6")
    k("v_xor_b32 v9, 1, v9")
    k("v_lshl_add_u32 v8, v9, 3, v8")
    k("v_add_u32 v24, %d, v8" % KXL)
    k("v_xor_b32 v25, 16, v24")
    k("v_add_u32 v26, %d, v2" % STL)
    k("v_mul_u32_u24 v27, 20480, v5")
    k("v_lshl_add_u32 v27, v6, 3, v27")
    k("s_lshl_b32 s43, s5, 5")
    ACC, QQ, AA, TMP = 32, 64, 96, 128
    for i in range(32): k("v_mov_b32 v%d, 0" % (ACC + i))
    k("s_waitcnt vmcnt(0) lgkmcnt(0)")
    k("s_barrier")
    def frag_loads(r, st):
        L = []
        fb, gb = 64 * st, 64 * st + 32
        for i in range(8):
            q = i
            o = 16 * (8 * (q & 1) + r)
            L.append("ds_read_b128 a[%d:%d], v%d offset:%d" % (gb + 4 * i, gb + 4 * i + 3, 20 + (r & 3), 4096 * i + (2048 if r < 4 else 0)))
            L.append("ds_read2_b32 a[%d:%d], v%d offset0:%d offset1:%d" % (fb + 4 * q, fb + 4 * q + 1, 16 + (q >> 1), o, o + 1))
            L.append("ds_read2_b32 a[%d:%d], v%d offset0:%d offset1:%d" % (fb + 4 * q + 2, fb + 4 * q + 3, 16 + (q >> 1), o + 2, o + 3))
        return L
    def epi_loads(t):
        b = TMP + 12 * (t & 1)
        return ["ds_read_b64 v[%d:%d], v24 offset:%d" % (b, b + 1, 4096 * t),
                "ds_read_b64 v[%d:%d], v25 offset:%d" % (b + 2, b + 3, 4096 * t),
                "ds_read_b128 v[%d:%d], v26 offset:%d" % (b + 4, b + 7, 1024 * t),
                "ds_read_b128 v[%d:%d], v26 offset:%d" % (b + 8, b + 11, 8192 + 1024 * t)]
    def epi_pre(t):
        b = TMP + 12 * (t & 1); u = TMP + 24
        L = []
        for rp in range(4):
            for (src, dst) in ((b, u + rp), (b + 2, u + 4 + rp)):
                sreg = src + (1 if rp < 2 else 0)
                if rp & 1: L.append("v_lshlrev_b32 v%d, 16, v%d" % (dst, sreg))
                else: L.append("v_and_b32 v%d, 0xffff0000, v%d" % (dst, sreg))
        for rp in range(4): L.append("v_fma_f32 v%d, v%d, v%d, v%d" % (QQ + 4 * t + rp, u + 4 + rp, b + 4 + rp, b + 8 + rp))
        for rp in range(4): L.append("v_mul_f32 v%d, s40, v%d" % (u + rp, u + rp))
        for rp in range(4): L.append("v_fma_f32 v%d, v%d, v%d, v%d" % (AA + 4 * t + rp, QQ + 4 * t + rp, u + rp, u + 4 + rp))
        return L
    for l in frag_loads(0, 0) + epi_loads(0): k(l)
    for r in range(8):
        st = r & 1
        fb, gb = 64 * st, 64 * st + 32
        k("s_waitcnt lgkmcnt(0)")
        fill = (frag_loads(r + 1, st ^ 1) + epi_loads(r + 1)) if r < 7 else []
        valu = epi_pre(r)
        pairs = [(q, n) for tot in range(8) for q in range(tot + 1) for n in [tot - q]]
        pairs = sorted(pairs, key=lambda p: (max(p), p))
        for idx, (q, n) in enumerate(pairs):
            t = q + n
            k("v_mfma_f32_16x16x32_bf16 v[%d:%d], a[%d:%d], a[%d:%d], v[%d:%d]" % (ACC + 4 * t, ACC + 4 * t + 3, fb + 4 * q, fb + 4 * q + 3, gb + 4 * n, gb + 4 * n + 3, ACC + 4 * t, ACC + 4 * t + 3))
            if fill: k(fill.pop(0))
            if valu and idx >= 8: k(valu.pop(0))
        for l in fill + valu: k(l)
    for t in range(8):
        for rp in range(4): k("v_fma_f32 v%d, v%d, v%d, v%d" % (AA + 4 * t + rp, QQ + 4 * t + rp, ACC + 4 * t + rp, AA + 4 * t + rp))
        k("v_cvt_pk_bf16_f32 v%d, v%d, v%d" % (QQ + 4 * t, AA + 4 * t, AA + 4 * t + 1))
        k("v_cvt_pk_bf16_f32 v%d, v%d, v%d" % (QQ + 4 * t + 1, AA + 4 * t + 2, AA + 4 * t + 3))
        k("buffer_store_dwordx2 v[%d:%d], v27, s[20:23], s43 offen" % (QQ + 4 * t, QQ + 4 * t + 1))
        if t < 7: k("s_add_u32 s43, s43, %d" % (16 * 20480))
    k("s_endpgm")

    k.label("K1_PACK")
    k("s_sub_u32 s4, s2, 160")
    k("s_cmp_ge_u32 s4, 84")
    k("s_cbranch_scc1 K1_END")
    k("s_load_dwordx4 s[36:39], s[0:1], %d" % A_WG)
    k("s_load_dwordx2 s[40:41], s[0:1], %d" % A_WD)
    k("s_load_dwordx2 s[44:45], s[0:1], %d" % A_WS)
    k("v_lshrrev_b32 v4, 6, v0")
    k("v_and_b32 v3, 63, v0")
    k("v_readfirstlane_b32 s3, v4")
    k("v_lshlrev_b32 v2, 4, v3")
    k("s_waitcnt lgkmcnt(0)")
    k("s_cmp_ge_u32 s4, 54")
    k("s_cbranch_scc1 K1_PACK_D")
    k("s_cmp_ge_u32 s4, 27")
    k("s_cselect_b32 s5, 1, 0")
    k("s_cselect_b32 s36, s38, s36")
    k("s_cselect_b32 s37, s39, s37")
    k("s_mul_i32 s6, s5, 27")
    k("s_sub_u32 s6, s4, s6")
    k("s_mov_b32 s7, 3456")
    k("s_lshl_b32 s28, s6, 7")
    k("s_lshl_b32 s29, s6, 2")
    k("s_add_u32 s29, s29, s3")
    k("s_lshl_b32 s31, s29, 1")
    k("s_add_u32 s31, s31, s5")
    k("s_lshl_b32 s31, s31, 6")
    k("s_mul_i32 s29, s29, 40960")
    k("s_lshl_b32 s30, s5, 10")
    k("s_add_u32 s29, s29, s30")
    k("s_add_u32 s29, s29, 0x%x" % WS_W1)
    k("s_mov_b32 s30, 2048")
    k("s_mov_b32 s32, 1")
    k("s_branch K1_PACK_GO")
    k.label("K1_PACK_D")
    k("s_mov_b32 s36, s40")
    k("s_mov_b32 s37, s41")
    k("s_sub_u32 s4, s4, 54")
    k("s_cmp_ge_u32 s4, 10")
    k("s_cselect_b32 s5, 1, 0")
    k("s_cmp_ge_u32 s4, 20")
    k("s_cselect_b32 s5, 2, s5")
    k("s_mul_i32 s6, s5, 10")
    k("s_sub_u32 s6, s4, s6")
    k("s_mov_b32 s7, 1280")
    k("s_mul_i32 s28, s5, %d" % (576 * 1280))
    k("s_lshl_b32 s29, s6, 7")
    k("s_add_u32 s28, s28, s29")
    k("s_lshl_b32 s29, s6, 2")
    k("s_add_u32 s29, s29, s3")
    k("s_mul_i32 s30, s29, 52429")
    k("s_lshr_b32 s30, s30, 18")
    k("s_mul_i32 s31, s30, 5")
    k("s_sub_u32 s31, s29, s31")
    k("s_mul_i32 s29, s30, %d" % (54 * 5120))
    k("s_lshl_b32 s31, s31, 10")
    k("s_add_u32 s29, s29, s31")
    k("s_mul_i32 s31, s5, %d" % (18 * 5120))
    k("s_add_u32 s29, s29, s31")
    k("s_add_u32 s29, s29, 0x%x" % WS_W2)
    k("s_mov_b32 s30, 5120")
    k("s_mov_b32 s31, 0")
    k("s_mov_b32 s32, 0")
    k.label("K1_PACK_GO")
    srd(k, 8, 36, D * F * 2)
    srd(k, 12, 44, WS_W2 + SZ_W2)
    srd(k, 16, 44, SZ_CS, WS_CS)
    k("v_lshrrev_b32 v5, 3, v3")
    k("v_lshl_add_u32 v5, v4, 3, v5")
    k("v_mul_lo_u32 v5, v5, s7")
    k("v_lshrrev_b32 v6, 1, v3")
    k("v_lshrrev_b32 v7, 4, v3")
    k("v_xor_b32 v6, v6, v7")
    k("v_and_b32 v6, 3, v6")
    k("v_lshl_add_u32 v5, v6, 5, v5")
    k("v_and_b32 v6, 1, v3")
    k("v_lshl_add_u32 v5, v6, 4, v5")
    k("s_lshl_b32 s33, s7, 5")
    k("s_lshl_b32 s34, s3, 10")
    for ii in range(20):
        k("s_mov_b32 m0, s34")
        k("s_add_u32 s34, s34, 4096")
        k("buffer_load_dwordx4 v5, s[8:11], s28 offen lds")
        k("s_add_u32 s28, s28, s33")
    k("v_lshrrev_b32 v6, 3, v3")
    k("v_xor_b32 v6, v6, v4")
    k("v_and_b32 v6, 3, v6")
    k("v_lshlrev_b32 v6, 5, v6")
    k("v_lshrrev_b32 v7, 2, v3")
    k("v_lshl_add_u32 v6, v7, 7, v6")
    k("v_and_b32 v7, 3, v3")
    k("v_lshl_add_u32 v6, v7, 3, v6")
    k("v_add_u32 v7, 40960, v6")
    for i in range(4):
        k("v_mov_b32 v%d, 0x3f803f80" % (8 + i))
        k("v_mov_b32 v%d, 0" % (12 + i))
    for c in range(4):
        k("s_waitcnt vmcnt(15)")
        k("s_barrier")
        for j in range(5):
            kk = 5 * c + j
            base = 6 if kk < 10 else 7
            o = 4096 * (kk % 10)
            k("ds_read_b64_tr_b16 v[%d:%d], v%d offset:%d" % (16 + 4 * j, 17 + 4 * j, base, o))
            k("ds_read_b64_tr_b16 v[%d:%d], v%d offset:%d" % (18 + 4 * j, 19 + 4 * j, base, o + 2048))
        for j in range(5):
            kk = 5 * c + j
            if kk == 18:
                k("s_cmp_eq_u32 s32, 0")
                k("s_cbranch_scc1 K1_END")
            k("s_waitcnt lgkmcnt(%d)" % (8 - 2 * j))
            k("buffer_store_dwordx4 v[%d:%d], v2, s[12:15], s29 offen" % (16 + 4 * j, 19 + 4 * j))
            k("s_add_u32 s29, s29, s30")
            k("v_mfma_f32_16x16x32_bf16 v[12:15], v[%d:%d], v[8:11], v[12:15]" % (16 + 4 * j, 19 + 4 * j))
    k("v_and_b32 v5, 48, v3")
    k("s_mov_b32 s52, 0x00010001")
    k("s_mov_b32 s53, 0x00010001")
    k("s_mov_b64 exec, s[52:53]")
    k("buffer_store_dwordx4 v[12:15], v5, s[16:19], s31 offen")
    k.label("K1_END")
    k("s_endpgm")
    return k

def gen_k2():
    k = K("k2_gemm1_kernel")
    k("s_cmp_ge_u32 s2, 256")
    k("s_cbranch_scc1 K2_END")
    k("s_load_dwordx2 s[44:45], s[0:1], %d" % A_WS)
    k("v_lshrrev_b32 v4, 6, v0")
    k("v_and_b32 v3, 63, v0")
    k("v_readfirstlane_b32 s3, v4")
    k("v_lshlrev_b32 v2, 4, v3")
    k("v_lshlrev_b32 v5, 3, v3")
    k("v_add_u32 v6, %d, v5" % (3 * 20480))
    k("v_add_u32 v7, %d, v5" % (6 * 20480))
    k("s_and_b32 s4, s2, 1")
    k("s_lshl_b32 s4, s4, 3")
    k("s_bfe_u32 s5, s2, 0x30003")
    k("s_add_u32 s4, s4, s5")
    k("s_bfe_u32 s5, s2, 0x20001")
    k("s_lshl_b32 s5, s5, 2")
    k("s_lshr_b32 s6, s2, 6")
    k("s_add_u32 s5, s5, s6")
    k("s_mul_i32 s6, s5, 7")
    k("s_add_u32 s6, s6, s3")
    k("s_lshl_b32 s7, s4, 3")
    k("s_add_u32 s7, s7, s3")
    k("s_mul_i32 s28, s7, 20480")
    k("s_mul_i32 s29, s3, 20480")
    k("s_mul_i32 s30, s6, 40960")
    k("s_lshl_b32 s31, s6, 7")
    k("v_and_b32 v8, 48, v3")
    k("s_waitcnt lgkmcnt(0)")
    srd(k, 8, 44, SZ_HT, WS_HT)
    srd(k, 12, 44, SZ_W1, WS_W1)
    srd(k, 16, 44, SZ_CS, WS_CS)
    srd(k, 20, 44, SZ_HP, WS_HP)
    ACT, AG, AU, CSR = 16, 48, 80, 112
    NPRE = 16
    def tr(kk, sg):
        base = 5 + sg // 3
        o = (sg % 3) * 20480 + kk * 1024
        return ["ds_read_b64_tr_b16 v[%d:%d], v%d offset:%d" % (ACT + 4 * sg, ACT + 4 * sg + 1, base, o),
                "ds_read_b64_tr_b16 v[%d:%d], v%d offset:%d" % (ACT + 4 * sg + 2, ACT + 4 * sg + 3, base, o + 512)]
    def dma(kk):
        if kk % 4 == 0:
            k("s_mov_b32 m0, s29")
            k("s_add_u32 s29, s29, 4096")
        k("buffer_load_dwordx4 v2, s[8:11], s28 offen offset:%d lds" % (1024 * (kk % 4)))
        if kk % 4 == 3: k("s_add_u32 s28, s28, 4096")
    k("s_cmp_eq_u32 s3, 7")
    k("s_cbranch_scc1 K2_STATS")
    vm = VM()
    def wload(kk):
        slot = kk % NPRE
        for m in range(2):
            k("buffer_load_dwordx4 a[%d:%d], v2, s[12:15], s30 offen offset:%d" % (8 * slot + 4 * m, 8 * slot + 4 * m + 3, 2048 * (kk % 2) + 1024 * m))
            vm.issue(("w", kk))
        if kk % 2 == 1: k("s_add_u32 s30, s30, 4096")
    for kk in range(20):
        dma(kk); vm.issue(("d", kk))
        if kk < NPRE: wload(kk)
        if kk == 2:
            k("buffer_load_dwordx4 v[%d:%d], v8, s[16:19], s31 offen" % (CSR, CSR + 3)); vm.issue("cs")
            k("buffer_load_dwordx4 v[%d:%d], v8, s[16:19], s31 offen offset:64" % (CSR + 4, CSR + 7)); vm.issue("cs")
    for i in range(64): k("v_mov_b32 v%d, 0" % (AG + i))
    k("s_waitcnt vmcnt(%d)" % vm.wait(("d", 0)))
    k("s_barrier")
    for sg in range(8):
        for l in tr(0, sg): k(l)
    for kk in range(20):
        tags = [("w", kk)] + ([("d", kk + 1)] if kk < 19 else [])
        k("s_waitcnt vmcnt(%d)" % vm.wait(*tags))
        if kk < 19: k("s_barrier")
        slot = kk % NPRE
        for sg in range(8):
            k("s_waitcnt lgkmcnt(%d)" % (14 if kk < 19 else 14 - 2 * sg))
            k("v_mfma_f32_16x16x32_bf16 v[%d:%d], a[%d:%d], v[%d:%d], v[%d:%d]" % (AG + 4 * sg, AG + 4 * sg + 3, 8 * slot, 8 * slot + 3, ACT + 4 * sg, ACT + 4 * sg + 3, AG + 4 * sg, AG + 4 * sg + 3))
            k("v_mfma_f32_16x16x32_bf16 v[%d:%d], a[%d:%d], v[%d:%d], v[%d:%d]" % (AU + 4 * sg, AU + 4 * sg + 3, 8 * slot + 4, 8 * slot + 7, ACT + 4 * sg, ACT + 4 * sg + 3, AU + 4 * sg, AU + 4 * sg + 3))
            if kk < 19:
                for l in tr(kk + 1, sg): k(l)
        if kk + NPRE < 20: wload(kk + NPRE)
    k("s_barrier")
    k("s_barrier")
    k("v_and_b32 v9, 15, v3")
    k("v_lshlrev_b32 v9, 3, v9")
    for sg in range(8): k("ds_read_b64 v[%d:%d], v9 offset:%d" % (ACT + 2 * sg, ACT + 2 * sg + 1, 2048 + 128 * sg))
    k("s_lshl_b32 s32, s4, 1")
    k("s_mul_i32 s32, s32, %d" % (54 * 4096))
    k("s_lshr_b32 s33, s6, 1")
    k("s_lshl_b32 s33, s33, 12")
    k("s_add_u32 s32, s32, s33")
    k("s_and_b32 s33, s6, 1")
    k("s_lshl_b32 s33, s33, 3")
    k("s_add_u32 s32, s32, s33")
    k("s_add_u32 s33, s32, %d" % (54 * 4096))
    k("s_cmp_ge_u32 s6, 108")
    k("s_cbranch_scc1 K2_END")
    for sg in range(8):
        k("s_waitcnt lgkmcnt(%d)" % (7 - sg))
        m = ACT + 2 * sg
        for h in range(2):
            g = AG + 4 * sg + 2 * h; u = AU + 4 * sg + 2 * h
            k("v_pk_fma_f32 v[%d:%d], v[%d:%d], v[%d:%d], v[%d:%d] op_sel_hi:[1,0,1] neg_lo:[1,0,0] neg_hi:[1,0,0]" % (g, g + 1, CSR + 2 * h, CSR + 2 * h + 1, m, m + 1, g, g + 1))
            k("v_pk_fma_f32 v[%d:%d], v[%d:%d], v[%d:%d], v[%d:%d] op_sel_hi:[1,0,1] neg_lo:[1,0,0] neg_hi:[1,0,0]" % (u, u + 1, CSR + 4 + 2 * h, CSR + 4 + 2 * h + 1, m, m + 1, u, u + 1))
        for h in range(4): k("v_max_f32 v%d, 0, v%d" % (AG + 4 * sg + h, AG + 4 * sg + h))
        for h in range(2):
            u = AU + 4 * sg + 2 * h
            k("v_pk_mul_f32 v[%d:%d], v[%d:%d], v[%d:%d] op_sel:[0,1] op_sel_hi:[1,1]" % (u, u + 1, u, u + 1, m, m + 1))
        for h in range(2):
            g = AG + 4 * sg + 2 * h; u = AU + 4 * sg + 2 * h
            k("v_pk_mul_f32 v[%d:%d], v[%d:%d], v[%d:%d]" % (g, g + 1, g, g + 1, u, u + 1))
        k("v_cvt_pk_bf16_f32 v%d, v%d, v%d" % (AU + 4 * sg, AG + 4 * sg, AG + 4 * sg + 1))
        k("v_cvt_pk_bf16_f32 v%d, v%d, v%d" % (AU + 4 * sg + 1, AG + 4 * sg + 2, AG + 4 * sg + 3))
        k("buffer_store_dwordx2 v[%d:%d], v2, s[20:23], s%d offen offset:%d" % (AU + 4 * sg, AU + 4 * sg + 1, 32 + (sg >> 2), 1024 * (sg & 3)))
    k("s_endpgm")
    k.label("K2_STATS")
    k("s_setprio 3")
    vm = VM()
    for kk in range(20):
        dma(kk); vm.issue(("d", kk))
    for i in range(64): k("v_mov_b32 v%d, 0" % (AG + i))
    for i in range(4): k("v_mov_b32 v%d, 0x3f803f80" % (CSR + i))
    k("s_waitcnt vmcnt(%d)" % vm.wait(("d", 0)))
    k("s_barrier")
    for sg in range(8):
        for l in tr(0, sg): k(l)
    for kk in range(20):
        if kk < 19:
            k("s_waitcnt vmcnt(%d)" % vm.wait(("d", kk + 1)))
            k("s_barrier")
        for sg in range(8):
            k("s_waitcnt lgkmcnt(%d)" % (14 if kk < 19 else 14 - 2 * sg))
            k("v_mfma_f32_16x16x32_bf16 v[%d:%d], v[%d:%d], v[%d:%d], v[%d:%d]" % (AG + 4 * sg, AG + 4 * sg + 3, ACT + 4 * sg, ACT + 4 * sg + 3, ACT + 4 * sg, ACT + 4 * sg + 3, AG + 4 * sg, AG + 4 * sg + 3))
            k("v_mfma_f32_16x16x32_bf16 v[%d:%d], v[%d:%d], v[%d:%d], v[%d:%d]" % (AU + 4 * sg, AU + 4 * sg + 3, CSR, CSR + 3, ACT + 4 * sg, ACT + 4 * sg + 3, AU + 4 * sg, AU + 4 * sg + 3))
            if kk < 19:
                for l in tr(kk + 1, sg): k(l)
    k("v_and_b32 v9, 3, v3")
    k("v_cmp_eq_u32 s[34:35], 1, v9")
    k("v_cmp_eq_u32 s[36:37], 2, v9")
    k("v_cmp_eq_u32 s[38:39], 3, v9")
    k("v_and_b32 v9, 15, v3")
    k("v_lshlrev_b32 v9, 3, v9")
    for sg in range(8):
        b = AG + 4 * sg
        k("v_cndmask_b32 v%d, v%d, v%d, s[34:35]" % (b, b, b + 1))
        k("v_cndmask_b32 v%d, v%d, v%d, s[36:37]" % (b, b, b + 2))
        k("v_cndmask_b32 v%d, v%d, v%d, s[38:39]" % (b + 1, b, b + 3))
        k("v_mov_b32 v%d, v%d" % (b, AU + 4 * sg))
    k("s_barrier")
    k("s_mov_b32 s40, 0x00f0000f")
    k("s_mov_b32 s41, 0xf0000f00")
    k("s_mov_b64 exec, s[40:41]")
    for sg in range(8): k("ds_write_b64 v9, v[%d:%d] offset:%d" % (AG + 4 * sg, AG + 4 * sg + 1, 128 * sg))
    k("s_mov_b64 exec, -1")
    k("s_waitcnt lgkmcnt(0)")
    k("ds_read_b64 v[16:17], v5")
    k("ds_read_b64 v[24:25], v5 offset:512")
    k("s_waitcnt lgkmcnt(1)")
    ln_stats(k, 16, 17, 18, 19, 20)
    k("s_waitcnt lgkmcnt(0)")
    ln_stats(k, 24, 25, 26, 27, 28)
    k("v_mul_f32 v19, v19, v19")
    k("v_mul_f32 v27, v27, v27")
    k("ds_write_b64 v5, v[18:19] offset:2048")
    k("ds_write_b64 v5, v[26:27] offset:2560")
    k("s_waitcnt lgkmcnt(0)")
    k("s_barrier")
    k.label("K2_END")
    k("s_endpgm")
    return k

K3_LDS = 12288 + 61440

def gen_k3():
    k = K("k3_gemm2_kernel")
    k("s_cmp_ge_u32 s2, 256")
    k("s_cbranch_scc1 K3_END")
    k("s_load_dwordx2 s[44:45], s[0:1], %d" % A_WS)
    k("s_load_dwordx2 s[46:47], s[0:1], %d" % A_OUT)
    k("v_lshrrev_b32 v4, 6, v0")
    k("v_and_b32 v3, 63, v0")
    k("v_readfirstlane_b32 s3, v4")
    k("v_lshlrev_b32 v2, 4, v3")
    k("s_and_b32 s4, s2, 3")
    k("s_lshl_b32 s4, s4, 3")
    k("s_bfe_u32 s5, s2, 0x30003")
    k("s_add_u32 s4, s4, s5")
    k("s_bfe_u32 s5, s2, 0x10002")
    k("s_lshl_b32 s5, s5, 2")
    k("s_lshr_b32 s6, s2, 6")
    k("s_add_u32 s5, s5, s6")
    k("s_mul_i32 s28, s4, %d" % (54 * 4096))
    k("s_lshl_b32 s6, s3, 12")
    k("s_add_u32 s28, s28, s6")
    k("s_mul_i32 s29, s5, %d" % (54 * 5120))
    k("s_mul_i32 s6, s3, 5120")
    k("s_add_u32 s29, s29, s6")
    k("s_add_u32 s30, s29, 4096")
    k("s_lshl_b32 s6, s4, 2")
    k("s_add_u32 s6, s6, s3")
    k("s_mul_i32 s31, s6, 20480")
    k("s_mul_i32 s7, s5, 2560")
    k("s_add_u32 s31, s31, s7")
    k("s_mul_i32 s32, s3, 3072")
    k("s_waitcnt lgkmcnt(0)")
    srd(k, 8, 44, SZ_HP, WS_HP)
    srd(k, 12, 44, SZ_W2, WS_W2)
    srd(k, 16, 44, SZ_HT, WS_HT)
    srd(k, 20, 46, S * D * 2)
    ACC = 16
    DEPTH = 5
    vm = VM()
    def loads(i):
        b = 36 * (i % 6)
        for sg in range(4):
            k("buffer_load_dwordx4 a[%d:%d], v2, s[8:11], s28 offen offset:%d" % (b + 4 * sg, b + 4 * sg + 3, 1024 * sg)); vm.issue(("h", i))
        for n in range(4):
            k("buffer_load_dwordx4 a[%d:%d], v2, s[12:15], s29 offen offset:%d" % (b + 16 + 4 * n, b + 19 + 4 * n, 1024 * n)); vm.issue(("w", i, n))
        k("buffer_load_dwordx4 a[%d:%d], v2, s[12:15], s30 offen" % (b + 32, b + 35)); vm.issue(("w", i, 4))
        k("s_add_u32 s28, s28, %d" % (4 * 4096))
        k("s_add_u32 s29, s29, %d" % (4 * 5120))
        k("s_add_u32 s30, s30, %d" % (4 * 5120))
    for i in range(DEPTH):
        loads(i)
        if i == 1:
            k("s_mov_b32 m0, s32")
            for j in range(3):
                k("buffer_load_dwordx4 v2, s[16:19], s31 offen offset:%d lds" % (1024 * j)); vm.issue("res")
    for i in range(80): k("v_mov_b32 v%d, 0" % (ACC + i))
    for i in range(14):
        if i == 13:
            k("s_cmp_ge_u32 s3, 2")
            k("s_cbranch_scc1 K3_RED")
        if i + DEPTH < 14: loads(i + DEPTH)
        b = 36 * (i % 6)
        for n in range(5):
            k("s_waitcnt vmcnt(%d)" % vm.wait(("w", i, n)))
            for sg in range(4):
                c = ACC + 4 * (5 * sg + n)
                k("v_mfma_f32_16x16x32_bf16 v[%d:%d], a[%d:%d], a[%d:%d], v[%d:%d]" % (c, c + 3, b + 16 + 4 * n, b + 19 + 4 * n, b + 4 * sg, b + 4 * sg + 3, c, c + 3))
    k.label("K3_RED")
    k("s_waitcnt vmcnt(0)")
    for dd in range(1, 4):
        k("s_add_u32 s33, s3, %d" % dd)
        k("s_and_b32 s33, s33, 3")
        k("s_mul_i32 s34, s33, 15360")
        k("s_add_u32 s34, s34, %d" % (12288 + (3 - dd) * 5120))
        k("v_add_u32 v%d, s34, v2" % (4 + dd))
    for w in range(4):
        if w: k.label("K3_W%d" % w)
        if w < 3:
            k("s_cmp_lg_u32 s3, %d" % w)
            k("s_cbranch_scc1 K3_W%d" % (w + 1))
        for dd in range(1, 4):
            dst = (w + dd) & 3
            for n in range(5):
                c = ACC + 4 * (5 * dst + n)
                k("ds_write_b128 v%d, v[%d:%d] offset:%d" % (4 + dd, c, c + 3, 1024 * n))
        if w:
            for i in range(20): k("v_mov_b32 v%d, v%d" % (ACC + i, ACC + 20 * w + i))
        if w < 3: k("s_branch K3_SUM")
    k.label("K3_SUM")
    k("s_mul_i32 s34, s3, 15360")
    k("s_add_u32 s34, s34, 12288")
    k("v_add_u32 v5, s34, v2")
    k("v_lshlrev_b32 v6, 3, v3")
    k("v_add_u32 v6, s32, v6")
    k("v_and_b32 v7, 15, v3")
    k("v_mul_u32_u24 v7, 1280, v7")
    k("v_lshrrev_b32 v8, 4, v3")
    k("v_lshl_add_u32 v7, v8, 3, v7")
    k("s_mul_i32 s35, s6, %d" % (16 * 1280))
    k("s_mul_i32 s36, s5, 160")
    k("s_add_u32 s35, s35, s36")
    k("s_waitcnt lgkmcnt(0)")
    k("s_barrier")
    P = 36
    for n in range(5):
        for sl in range(3):
            r = P + 12 * n + 4 * sl
            k("ds_read_b128 v[%d:%d], v5 offset:%d" % (r, r + 3, 5120 * sl + 1024 * n))
    HR = 96
    for n in range(5):
        k("s_waitcnt lgkmcnt(%d)" % min(15, 12 - 3 * n + n))
        k("ds_read_b64_tr_b16 v[%d:%d], v6 offset:%d" % (HR + 2 * n, HR + 2 * n + 1, 512 * n))
        c = ACC + 4 * n
        for sl in range(3):
            r = P + 12 * n + 4 * sl
            for h in range(2):
                k("v_pk_add_f32 v[%d:%d], v[%d:%d], v[%d:%d]" % (c + 2 * h, c + 2 * h + 1, c + 2 * h, c + 2 * h + 1, r + 2 * h, r + 2 * h + 1))
    for n in range(5):
        c = ACC + 4 * n
        k("s_waitcnt lgkmcnt(%d)" % (4 - n))
        t = P + 4 * n
        k("v_lshlrev_b32 v%d, 16, v%d" % (t, HR + 2 * n))
        k("v_and_b32 v%d, 0xffff0000, v%d" % (t + 1, HR + 2 * n))
        k("v_lshlrev_b32 v%d, 16, v%d" % (t + 2, HR + 2 * n + 1))
        k("v_and_b32 v%d, 0xffff0000, v%d" % (t + 3, HR + 2 * n + 1))
        for h in range(2):
            k("v_pk_add_f32 v[%d:%d], v[%d:%d], v[%d:%d]" % (c + 2 * h, c + 2 * h + 1, c + 2 * h, c + 2 * h + 1, t + 2 * h, t + 2 * h + 1))
        k("v_cvt_pk_bf16_f32 v%d, v%d, v%d" % (c, c, c + 1))
        k("v_cvt_pk_bf16_f32 v%d, v%d, v%d" % (c + 1, c + 2, c + 3))
        k("buffer_store_dwordx2 v[%d:%d], v7, s[20:23], s35 offen offset:%d" % (c, c + 1, 32 * n))
    k.label("K3_END")
    k("s_endpgm")
    return k

def main(out):
    hdr = open("cdna_kernels/%s.s.ref" % NAME).read().split("; Override launch")[0]
    ks = [gen_k0(), gen_k1(), gen_k2(), gen_k3()]
    launches = [("k0_prep_kernel", 256, 320, 1024 + 5 * 4096), ("k1_conv_kernel", 244, 256, K1_LDS),
                ("k2_gemm1_kernel", 256, 512, 163840), ("k3_gemm2_kernel", 256, 256, K3_LDS)]
    txt = hdr
    for n, g, b, l in launches:
        txt += "; @launch kernel=%s grid=(%d,1,1) block=(%d,1,1) lds=%d\n" % (n, g, b, l)
    txt += '.amdgcn_target "amdgcn-amd-amdhsa--gfx950"\n'
    parts = [kernel_text(k) for k in ks]
    txt += "\n".join(p[0] for p in parts) + "\n" + "\n".join(p[1] for p in parts) + "\n"
    open(out, "w").write(txt)

if __name__ == "__main__":
    main(sys.argv[1] if len(sys.argv) > 1 else "cdna_kernels/%s.s" % NAME)
```
